```python
import torch

def _softmax(x, axis=-1):
    return torch.softmax(x, dim=axis)
def _gelu(x):
    return torch.nn.functional.gelu(x, approximate="tanh")
def _silu(x):
    return torch.nn.functional.silu(x)
def _sigmoid(x):
    return torch.sigmoid(x)
def _layernorm(x, axis=-1, eps=1e-5):
    m = x.mean(dim=axis, keepdim=True)
    v = x.var(dim=axis, keepdim=True, unbiased=False)
    return (x - m) / torch.sqrt(v + eps)
def _scatter_add(tgt, idx, src, axis=0):
    return tgt.clone().index_add_(axis, idx, src)
def _segment_sum(src, seg, n):
    out = torch.zeros((n,) + src.shape[1:], dtype=src.dtype)
    return out.index_add_(0, seg, src)
def _pad(x, pw):
    flat = tuple(v for pair in reversed(pw) for v in pair)
    return torch.nn.functional.pad(x, flat)

kernel_name = 'standalone__geglu_ffn__decode'

def setup_inputs():

    _w = (lambda a: (lambda t: t.to(torch.bfloat16) if t.is_floating_point() else t)(torch.as_tensor(a)))
    B, S, D, F = 4, 1, 1024, 3584
    return {
        "x": _w((lambda *s: torch.randn(*s, dtype=torch.bfloat16) * 0.05)(B, S, D)),
        "w_gate": _w((lambda *s: torch.randn(*s, dtype=torch.bfloat16) * 0.05)(D, F)),
        "w_up": _w((lambda *s: torch.randn(*s, dtype=torch.bfloat16) * 0.05)(D, F)),
        "w_down": _w((lambda *s: torch.randn(*s, dtype=torch.bfloat16) * 0.05)(F, D)),
    }

def reference(x, w_gate, w_up, w_down):
    return (_gelu(x @ w_gate) * (x @ w_up)) @ w_down
```

```python
import sys, struct, math
sys.path.insert(0, 'bench')

def f2u(f): return struct.unpack('<I', struct.pack('<f', f))[0]

H1_OFF  = 0x10000
P2A_OFF = 0x100000
P2B_OFF = 0x180000
NWG = 224
WBYTES = 1024*3584*2

def gen(name, stamp=False, prewrite=True, pathb=True, nA=64, early_poll=True, bonly=False, opts=None):
    o = []
    def e(s): o.append('  ' + s)
    def lab(s): o.append(s + ':')
    def st(i):
        if stamp: e(f's_memrealtime s[{80+2*i}:{81+2*i}]')
    L = lambda s: f'L_{s}_{name}'
    vX, vW, vD, vF, vG, vA, vP = 16, 24, 88, 120, 152, 184, 216
    T = 232
    st(0)
    e(f's_cmp_ge_u32 s2, {NWG}')
    e(f's_cbranch_scc1 {L("end")}')
    e('s_load_dwordx8 s[4:11], s[0:1], 0')
    e('s_load_dwordx2 s[16:17], s[0:1], 48')
    e('s_load_dwordx4 s[12:15], s[0:1], 32')
    if stamp:
        for i in range(1, 8):
            if i != 6: e(f's_mov_b64 s[{80+2*i}:{81+2*i}], 0')
        e('s_getreg_b32 s92, hwreg(HW_REG_XCC_ID)')
        e('s_getreg_b32 s93, hwreg(HW_REG_HW_ID)')
    e('v_lshrrev_b32 v1, 6, v0')
    e('v_and_b32 v0, 63, v0')
    e('s_and_b32 s40, s2, 7')
    e('v_readfirstlane_b32 s3, v1')
    e('s_lshr_b32 s41, s2, 3')
    e('s_lshr_b32 s42, s40, 1')
    e('v_lshrrev_b32 v2, 4, v0')
    e('v_and_b32 v3, 15, v0')
    e('s_lshl_b32 s43, s42, 2')
    e('s_add_u32 s43, s43, s3')
    e(f's_mul_i32 s44, s43, {64*7168}')
    e('s_lshl_b32 s45, s41, 8')
    e('s_add_u32 s44, s44, s45')
    e(f'v_mul_u32_u24 v4, {8*7168}, v2')
    e('v_lshlrev_b32 v5, 4, v3')
    e('v_add3_u32 v4, v4, v5, s44')
    e('s_lshl_b32 s45, s43, 7')
    e('v_lshrrev_b32 v6, 2, v3')
    e('v_lshlrev_b32 v6, 11, v6')
    e('v_lshlrev_b32 v7, 4, v2')
    e('v_add3_u32 v6, v6, v7, s45')
    e('s_lshl_b32 s45, s41, 18')
    e('s_lshl_b32 s46, s3, 16')
    e('s_add_u32 s45, s45, s46')
    e('s_lshl_b32 s46, s40, 8')
    e('s_add_u32 s45, s45, s46')
    e('v_and_b32 v7, 1, v2')
    e('v_lshlrev_b32 v7, 13, v7')
    e('v_lshrrev_b32 v8, 1, v2')
    e('v_lshlrev_b32 v8, 12, v8')
    e('v_add3_u32 v7, v7, v8, v5')
    e('v_add_u32 v7, s45, v7')
    for t in range(1, 8): e(f's_mov_b32 s{47+t}, {t*7168}')
    for t in range(8): e(f's_mov_b32 s{55+t}, {(32+t)*7168}')
    e('s_mov_b32 s63, 16384'); e('s_mov_b32 s64, 32768'); e('s_mov_b32 s65, 49152')
    e(f's_mov_b32 s22, {WBYTES}'); e('s_mov_b32 s23, 0x20000')
    e(f's_mov_b32 s26, {WBYTES}'); e('s_mov_b32 s27, 0x20000')
    e('s_mov_b32 s30, 8192'); e('s_mov_b32 s31, 0x20000')
    e('s_mov_b32 s34, 0x400000'); e('s_mov_b32 s35, 0x20000')
    e('s_mov_b32 s38, 8192'); e('s_mov_b32 s39, 0x20000')
    e('s_and_b32 s46, s40, 1')
    e('s_waitcnt lgkmcnt(0)')
    e('s_cselect_b32 s20, s8, s6')
    e('s_cselect_b32 s21, s9, s7')
    e('s_mov_b32 s28, s4'); e('s_mov_b32 s29, s5')
    e(f'buffer_load_dwordx4 v[{vX}:{vX+3}], v6, s[28:31], 0 offen')
    e(f'buffer_load_dwordx4 v[{vX+4}:{vX+7}], v6, s[28:31], 0 offen offset:64')
    for s in range(2):
        for t in range(8):
            so = '0' if (s == 0 and t == 0) else (f's{47+t}' if s == 0 else f's{55+t}')
            r = vW + (s*8+t)*4
            e(f'buffer_load_dwordx4 v[{r}:{r+3}], v4, s[20:23], {so} offen nt')
    e('s_mov_b32 s24, s10'); e('s_mov_b32 s25, s11')
    for t in range(8):
        so = ['0', 's63', 's64', 's65'][t >> 1]
        r = vD + t*4
        e(f'buffer_load_dwordx4 v[{r}:{r+3}], v7, s[24:27], {so} offen offset:{(t&1)*2048} nt')
    e('s_load_dword s66, s[16:17], 0')
    e('s_mov_b32 s32, s16'); e('s_mov_b32 s33, s17')
    e('s_mov_b32 s36, s12'); e('s_mov_b32 s37, s13')
    e('s_mov_b32 s67, 0x05040100'); e('s_mov_b32 s68, 0x07060302')
    e('s_mov_b32 s69, 0xfffff000')
    e('s_lshl_b32 s70, s41, 14')
    e(f's_add_u32 s70, s70, {H1_OFF}')
    e('s_lshl_b32 s71, s40, 9')
    e('s_add_u32 s71, s71, s70')
    e('s_lshl_b32 s72, s3, 8')
    e('s_add_u32 s71, s71, s72')
    e('v_lshrrev_b32 v8, 2, v3')
    e('v_lshlrev_b32 v8, 12, v8')
    e('v_and_b32 v9, 3, v3')
    e('v_lshl_add_u32 v9, v2, 2, v9')
    e('v_lshlrev_b32 v9, 4, v9')
    e('v_add3_u32 v8, v8, v9, s71')
    e('s_lshl_b32 s72, s3, 12')
    e('s_add_u32 s72, s72, s70')
    e('v_lshlrev_b32 v10, 4, v0')
    e('v_add_u32 v9, s72, v10')
    e('s_mul_i32 s73, s40, 57344')
    e(f's_add_u32 s73, s73, {P2A_OFF}')
    e('s_lshl_b32 s72, s41, 11')
    e('s_add_u32 s72, s72, s73')
    e('s_lshl_b32 s74, s3, 10')
    e('s_add_u32 s72, s72, s74')
    e('v_add_u32 v11, s72, v10')
    e('v_lshlrev_b32 v12, 2, v0')
    e('v_add_u32 v13, s74, v12')
    e('s_lshl_b32 s74, s3, 11')
    e('v_add_u32 v12, s74, v12')
    nextra = 0
    if prewrite:
        for i in range(4): e(f'v_mov_b32 v{T+i}, 0')
        e('s_cmp_lt_u32 s3, 2')
        e(f's_cselect_b32 s75, 0, 0x80000000')
        e('v_add_u32 v15, s75, v11')
        e(f'buffer_store_dwordx4 v[{T}:{T+3}], v15, s[32:35], 0 offen')
        nextra = 1
    def perms(raw, frag, p):
        a = raw + (2*p)*4; b = raw + (2*p+1)*4
        for ee in range(8):
            d, odd = ee >> 1, ee & 1
            e(f'v_perm_b32 v{frag+ee*4+p}, v{b+d}, v{a+d}, s{68 if odd else 67}')
    total = 2 + 16 + 8 + nextra
    for s in range(2):
        for p in range(4):
            done = 2 + s*8 + 2*p + 2
            e(f's_waitcnt vmcnt({total-done})')
            perms(vW + s*32, vF if s == 0 else vG, p)
        fr = vF if s == 0 else vG
        if s == 1 or True: e('s_nop 0')
        for ee in range(8):
            c = '0' if s == 0 else f'v[{vA+ee*4}:{vA+ee*4+3}]'
            e(f'v_mfma_f32_16x16x32_bf16 v[{vA+ee*4}:{vA+ee*4+3}], v[{vX+s*4}:{vX+s*4+3}], v[{fr+ee*4}:{fr+ee*4+3}], {c}')
    st(1)
    def lds_reduce_write(base):
        e('s_nop 3')
        for j in range(4):
            if j == 3: e('s_nop 0')
            e(f'ds_write2st64_b32 v12, v{vA+(2*j)*4}, v{vA+(2*j+1)*4} offset0:{base//256+2*j} offset1:{base//256+2*j+1}')
        e('s_waitcnt lgkmcnt(0)')
        e('s_barrier')
    def lds_reduce_read(base):
        for w in range(4):
            for j in range(2):
                e(f'ds_read2st64_b32 v[{T+w*4+2*j}:{T+w*4+2*j+1}], v13 offset0:{base//256+w*8+2*j} offset1:{base//256+w*8+2*j+1}')
        e('s_waitcnt lgkmcnt(4)')
        for j in range(4): e(f'v_add_f32 v{T+j}, v{T+j}, v{T+4+j}')
        e('s_waitcnt lgkmcnt(0)')
        for j in range(4): e(f'v_add_f32 v{T+8+j}, v{T+8+j}, v{T+12+j}')
        for j in range(4): e(f'v_add_f32 v{T+j}, v{T+j}, v{T+8+j}')
        for j in range(4): e(f'v_and_or_b32 v{T+j}, v{T+j}, s69, v14')
    e('s_waitcnt lgkmcnt(0)')
    e('s_add_u32 s76, s66, 2'); e('s_or_b32 s76, s76, 1'); e('s_and_b32 s76, s76, 0xfff')
    e('v_mov_b32 v14, s76')
    lds_reduce_write(0)
    e('s_cmp_ge_u32 s3, 2')
    e(f's_cbranch_scc1 {L("np1")}')
    lds_reduce_read(0)
    e(f'buffer_store_dwordx4 v[{T}:{T+3}], v8, s[32:35], 0 offen sc1')
    st(2)
    lab(L('np1'))
    def poll1_loads():
        for kq in range(4):
            e(f'buffer_load_dwordx4 v[{vP+kq*4}:{vP+kq*4+3}], v9, s[32:35], 0 offen offset:{kq*1024} sc1')
    if early_poll: poll1_loads()
    younger = nextra + (4 if early_poll else 0)
    for p in range(4):
        e(f's_waitcnt vmcnt({8 - (2*p+2) + younger})')
        perms(vD, vG, p)
    st(3)
    e('s_mov_b32 s77, 0')
    if not early_poll: poll1_loads()
    lab(L('poll1'))
    e('s_waitcnt vmcnt(0)')
    e(f'v_xor_b32 v15, v{vP}, v14')
    for i in range(1, 16): e(f'v_bitop3_b32 v15, v15, v{vP+i}, v14 bitop3:0xf6')
    e('v_and_b32 v15, 0xfff, v15')
    e('v_cmp_ne_u32 vcc, 0, v15')
    e(f's_cbranch_vccz {L("got1")}')
    poll1_loads()
    e('s_add_u32 s77, s77, 1')
    e('s_cmp_lt_u32 s77, 0x40000')
    e(f's_cbranch_scc1 {L("poll1")}')
    e('s_waitcnt vmcnt(0)')
    lab(L('got1'))
    st(4)
    for j in range(4): e(f'v_add_f32 v{vP+j}, v{vP+j}, v{vP+4+j}')
    for j in range(4): e(f'v_add_f32 v{vP+8+j}, v{vP+8+j}, v{vP+12+j}')
    for j in range(4): e(f'v_add_f32 v{vP+j}, v{vP+j}, v{vP+8+j}')
    e('s_nop 1')
    e(f'v_permlane32_swap_b32 v{vP}, v{vP+2}')
    e(f'v_permlane32_swap_b32 v{vP+1}, v{vP+3}')
    k0 = -2.0*math.log2(math.e)*math.sqrt(2.0/math.pi); k1 = k0*0.044715
    e(f's_mov_b32 s78, {f2u(k1):#x}')
    e(f'v_mov_b32 v{T+15}, {f2u(k0):#x}')
    e(f'v_cvt_pk_bf16_f32 v{T}, v{vP}, v{vP+1}')
    e(f'v_cvt_pk_bf16_f32 v{T+1}, v{vP+2}, v{vP+3}')
    e(f'v_lshlrev_b32 v{T+2}, 16, v{T}')
    e(f'v_and_b32 v{T+3}, 0xffff0000, v{T}')
    e(f'v_mul_f32 v{T+4}, v{T+2}, v{T+2}')
    e(f'v_mul_f32 v{T+5}, v{T+3}, v{T+3}')
    e(f'v_fma_f32 v{T+4}, v{T+4}, s78, v{T+15}')
    e(f'v_fma_f32 v{T+5}, v{T+5}, s78, v{T+15}')
    e(f'v_mul_f32 v{T+4}, v{T+4}, v{T+2}')
    e(f'v_mul_f32 v{T+5}, v{T+5}, v{T+3}')
    e(f'v_exp_f32 v{T+4}, v{T+4}')
    e(f'v_exp_f32 v{T+5}, v{T+5}')
    e(f'v_lshlrev_b32 v{T+6}, 16, v{T+1}')
    e(f'v_add_f32 v{T+4}, 1.0, v{T+4}')
    e(f'v_add_f32 v{T+5}, 1.0, v{T+5}')
    e(f'v_rcp_f32 v{T+4}, v{T+4}')
    e(f'v_rcp_f32 v{T+5}, v{T+5}')
    e(f'v_and_b32 v{T+7}, 0xffff0000, v{T+1}')
    e(f'v_mul_f32 v{T+4}, v{T+4}, v{T+2}')
    e(f'v_mul_f32 v{T+5}, v{T+5}, v{T+3}')
    e(f'v_cvt_pk_bf16_f32 v{T}, v{T+4}, v{T+5}')
    e(f'v_lshlrev_b32 v{T+2}, 16, v{T}')
    e(f'v_and_b32 v{T+3}, 0xffff0000, v{T}')
    e(f'v_mul_f32 v{T+2}, v{T+2}, v{T+6}')
    e(f'v_mul_f32 v{T+3}, v{T+3}, v{T+7}')
    e(f'v_cvt_pk_bf16_f32 v{T}, v{T+2}, v{T+3}')
    e('s_nop 1')
    for p in range(4):
        e(f'v_mov_b32_dpp v{vX+p}, v{T} quad_perm:[{p},{p},{p},{p}] row_mask:0xf bank_mask:0xf')
    e('s_nop 1')
    for ee in range(8):
        e(f'v_mfma_f32_16x16x32_bf16 v[{vA+ee*4}:{vA+ee*4+3}], v[{vX}:{vX+3}], v[{vG+ee*4}:{vG+ee*4+3}], 0')
    lds_reduce_write(8192)
    e('s_cmp_ge_u32 s3, 2')
    e(f's_cbranch_scc1 {L("red")}')
    lds_reduce_read(8192)
    if not bonly: e(f'buffer_store_dwordx4 v[{T}:{T+3}], v11, s[32:35], 0 offen')
    if pathb:
        e(f's_mov_b32 s75, {P2B_OFF-P2A_OFF}')
        e(f'buffer_store_dwordx4 v[{T}:{T+3}], v11, s[32:35], s75 offen sc1')
    st(5)
    e(f's_branch {L("fin")}')
    lab(L('red'))
    e('s_mov_b32 s79, s41')
    e('s_cmp_eq_u32 s3, 2')
    e(f's_cbranch_scc1 {L("red2")}')
    e('s_cmp_ge_u32 s41, 4')
    e(f's_cbranch_scc1 {L("fin")}')
    e('s_add_u32 s79, s41, 28')
    lab(L('red2'))
    e('s_lshl_b32 s72, s79, 6')
    e('s_add_u32 s72, s72, s73')
    e('v_lshrrev_b32 v4, 2, v0')
    e('v_lshlrev_b32 v4, 11, v4')
    e('v_and_b32 v6, 3, v0')
    e('v_lshlrev_b32 v5, 4, v6')
    e('v_add3_u32 v4, v4, v5, s72')
    e('v_add_u32 v5, 0x8000, v4')
    e('v_cmp_gt_u32 vcc, 48, v0')
    e('v_mov_b32 v7, 0x80000000')
    e(f's_mov_b32 s75, {P2B_OFF-P2A_OFF if bonly else 0}')
    e('v_cndmask_b32 v5, v7, v5, vcc')
    e('v_cndmask_b32 v7, 0, v14, vcc')
    e('s_mov_b32 s77, 0')
    lab(L('poll2'))
    e(f'buffer_load_dwordx4 v[{vP}:{vP+3}], v4, s[32:35], s75 offen sc1')
    e(f'buffer_load_dwordx4 v[{vP+4}:{vP+7}], v5, s[32:35], s75 offen sc1')
    e('s_waitcnt vmcnt(1)')
    e(f'v_xor_b32 v15, v{vP}, v14')
    for i in range(1, 4): e(f'v_bitop3_b32 v15, v15, v{vP+i}, v14 bitop3:0xf6')
    e('s_waitcnt vmcnt(0)')
    for i in range(4, 8): e(f'v_bitop3_b32 v15, v15, v{vP+i}, v7 bitop3:0xf6')
    e('v_and_b32 v15, 0xfff, v15')
    e('v_cmp_ne_u32 vcc, 0, v15')
    e(f's_cbranch_vccz {L("got2")}')
    e('s_add_u32 s77, s77, 1')
    if pathb and not bonly:
        e(f's_cmp_lt_u32 s77, {nA}')
        e(f's_cbranch_scc1 {L("poll2")}')
        e(f's_xor_b32 s75, s75, {P2B_OFF-P2A_OFF}')
    e('s_cmp_lt_u32 s77, 0x40000')
    e(f's_cbranch_scc1 {L("poll2")}')
    lab(L('got2'))
    for j in range(4): e(f'v_add_f32 v{vP+j}, v{vP+j}, v{vP+4+j}')
    e('s_lshr_b32 s72, s79, 2'); e('s_and_b32 s72, s72, 3'); e('s_lshl_b32 s72, s72, 11')
    e('v_permlane32_swap_b32 v%d, v%d' % (vP, vP+1))
    e('v_permlane32_swap_b32 v%d, v%d' % (vP+2, vP+3))
    e('s_lshl_b32 s74, s40, 8'); e('s_add_u32 s72, s72, s74')
    e(f'v_add_f32 v{vP}, v{vP}, v{vP+1}')
    e(f'v_add_f32 v{vP+2}, v{vP+2}, v{vP+3}')
    e('s_and_b32 s74, s79, 3'); e('s_lshl_b32 s74, s74, 6'); e('s_add_u32 s72, s72, s74')
    e('v_permlane16_swap_b32 v%d, v%d' % (vP, vP+2))
    e('s_lshr_b32 s74, s79, 4'); e('s_lshl_b32 s74, s74, 3'); e('s_add_u32 s72, s72, s74')
    e(f'v_add_f32 v{vP}, v{vP}, v{vP+2}')
    e('v_and_b32 v4, 1, v2')
    e('v_lshrrev_b32 v5, 1, v2')
    e(f'v_add_f32_dpp v{vP}, v{vP}, v{vP} row_ror:4 row_mask:0xf bank_mask:0xf')
    e('v_lshl_add_u32 v4, v4, 1, v5')
    e('v_lshlrev_b32 v4, 1, v4')
    e(f'v_add_f32_dpp v{vP}, v{vP}, v{vP} row_ror:8 row_mask:0xf bank_mask:0xf')
    e('v_lshl_add_u32 v4, v6, 4, v4')
    e('v_add_u32 v4, s72, v4')
    e('v_cmp_gt_u32 vcc, 4, v3')
    e('v_mov_b32 v5, 0x80000000')
    e(f'v_cvt_pk_bf16_f32 v{vP}, v{vP}, v{vP}')
    e('v_cndmask_b32 v4, v5, v4, vcc')
    e(f'buffer_store_short v{vP}, v4, s[36:39], 0 offen')
    e('s_or_b32 s72, s40, s79')
    e('s_cmp_lg_u32 s72, 0')
    e(f's_cbranch_scc1 {L("fin")}')
    e('v_lshlrev_b32 v4, 31, v0')
    e('buffer_store_dword v14, v4, s[32:35], 0 offen')
    lab(L('fin'))
    if stamp:
        e('s_waitcnt vmcnt(0)')
        st(7)
        e('s_lshl_b32 s60, s2, 2'); e('s_add_u32 s60, s60, s3'); e('s_lshl_b32 s60, s60, 6')
        e('s_add_u32 s60, s60, 0x8000000'); e('s_add_u32 s16, s16, s60'); e('s_addc_u32 s17, s17, 0')
        e('s_waitcnt lgkmcnt(0)')
        e('v_mov_b32 v2, 0')
        for i in range(16): e(f'v_mov_b32 v{4+i}, s{80+i}')
        e('v_cmp_eq_u32 vcc, 0, v0')
        e('s_and_saveexec_b64 s[62:63], vcc')
        e(f's_cbranch_execz {L("end")}')
        for i in range(4): e(f'global_store_dwordx4 v2, v[{4+4*i}:{7+4*i}], s[16:17] offset:{16*i}')
    lab(L('end'))
    e('s_endpgm')
    return '\n'.join(o) + '\n'

HDR = open('standalone__geglu_ffn__decode.s.ref').read().split('; Override launch')[0]
def final(path, **kw):
    name = 'standalone__geglu_ffn__decode_kernel'
    body = gen(name, **kw)
    txt = HDR + f'''; @launch grid=({NWG},1,1) block=(256,1,1) lds=16384
.amdgcn_target "amdgcn-amd-amdhsa--gfx950"
.text
.globl {name}
.p2align 8
.type {name},@function
{name}:
{body}.section .rodata,"a"
.p2align 6
.amdhsa_kernel {name}
  .amdhsa_next_free_vgpr 256
  .amdhsa_next_free_sgpr 102
  .amdhsa_accum_offset 256
  .amdhsa_group_segment_fixed_size 0
  .amdhsa_kernarg_size 56
  .amdhsa_user_sgpr_count 2
  .amdhsa_user_sgpr_kernarg_segment_ptr 1
  .amdhsa_system_sgpr_workgroup_id_x 1
.end_amdhsa_kernel
'''
    open(path, 'w').write(txt)

if __name__ == '__main__':
    from asmlib import *
    final('standalone__geglu_ffn__decode.s')
    variants = {
        'k_base': dict(),
        'k_noearly': dict(early_poll=False),
        'k_nopre': dict(prewrite=False),
        'k_bonly': dict(bonly=True, prewrite=False),
        'k_aonly': dict(pathb=False),
    }
    text = HEAD; ks = []
    for n, kw in variants.items():
        text += kernel_wrap(n, gen(n, stamp=True, **kw), vgpr=256, sgpr=102)
        ks.append((n, 256, 102, 256))
    text += metadata(ks)
    build('k1.s', text)
    open('run_k1.sh', 'w').write('#!/bin/bash\ncd bench\nexport EVICT=1\n' +
        ''.join(f'timeout 60 ./bench k1.co {n} 224 256 16384 21 40 896 1 ${{V:-0}}\n' for n in variants))
```
